```python
import torch

def _softmax(x, axis=-1):
    return torch.softmax(x, dim=axis)
def _gelu(x):
    return torch.nn.functional.gelu(x, approximate="tanh")
def _silu(x):
    return torch.nn.functional.silu(x)
def _sigmoid(x):
    return torch.sigmoid(x)
def _layernorm(x, axis=-1, eps=1e-5):
    m = x.mean(dim=axis, keepdim=True)
    v = x.var(dim=axis, keepdim=True, unbiased=False)
    return (x - m) / torch.sqrt(v + eps)
def _scatter_add(tgt, idx, src, axis=0):
    return tgt.clone().index_add_(axis, idx, src)
def _segment_sum(src, seg, n):
    out = torch.zeros((n,) + src.shape[1:], dtype=src.dtype)
    return out.index_add_(0, seg, src)
def _pad(x, pw):
    flat = tuple(v for pair in reversed(pw) for v in pair)
    return torch.nn.functional.pad(x, flat)

kernel_name = 'concat_heads__sliding_block_cached__sliding_block_cached__decode'

def setup_inputs():

    _w = (lambda a: (lambda t: t.to(torch.bfloat16) if t.is_floating_point() else t)(torch.as_tensor(a)))
    def _A_setup():
        B, Sq, D = 1, 1, 640
        Hq, Hkv, Sk, Dh = 32, 32, 8192, 192
        assert Hq % Hkv == 0, (Hq, Hkv)
        return {
            "x": _w((lambda *s: torch.randn(*s, dtype=torch.bfloat16) * 0.8)(B, Sq, D)),
            "k_cache": _w((lambda *s: torch.randn(*s, dtype=torch.bfloat16) * 0.8)(B, Hkv, Sk, Dh)),
            "v_cache": _w((lambda *s: torch.randn(*s, dtype=torch.bfloat16) * 0.05)(B, Hkv, Sk, Dh)),
            "wq": _w((lambda *s: torch.randn(*s, dtype=torch.bfloat16) * 0.8)(D, Hq * Dh) * (D ** -0.5)),
            "wo": _w((lambda *s: torch.randn(*s, dtype=torch.bfloat16) * 0.05)(Hq * Dh, D) * ((Hq * Dh) ** -0.5)),
        }
    _A_in = _A_setup()

    def _B_setup():
        B, Sq, D = 1, 1, 640
        Hq, Hkv, Sk, Dh = 32, 32, 8192, 192
        assert Hq % Hkv == 0, (Hq, Hkv)
        return {
            "x": _w((lambda *s: torch.randn(*s, dtype=torch.bfloat16) * 0.8)(B, Sq, D)),
            "k_cache": _w((lambda *s: torch.randn(*s, dtype=torch.bfloat16) * 0.8)(B, Hkv, Sk, Dh)),
            "v_cache": _w((lambda *s: torch.randn(*s, dtype=torch.bfloat16) * 0.05)(B, Hkv, Sk, Dh)),
            "wq": _w((lambda *s: torch.randn(*s, dtype=torch.bfloat16) * 0.8)(D, Hq * Dh) * (D ** -0.5)),
            "wo": _w((lambda *s: torch.randn(*s, dtype=torch.bfloat16) * 0.05)(Hq * Dh, D) * ((Hq * Dh) ** -0.5)),
        }
    _B_in = _B_setup()

    return {
        "A_x": _A_in["x"],
        "A_k_cache": _A_in["k_cache"],
        "A_v_cache": _A_in["v_cache"],
        "A_wq": _A_in["wq"],
        "A_wo": _A_in["wo"],
        "B_x": _B_in["x"],
        "B_k_cache": _B_in["k_cache"],
        "B_v_cache": _B_in["v_cache"],
        "B_wq": _B_in["wq"],
        "B_wo": _B_in["wo"],
    }

def reference(A_x, A_k_cache, A_v_cache, A_wq, A_wo, B_x, B_k_cache, B_v_cache, B_wq, B_wo):
    def _A_ref(x, k_cache, v_cache, wq, wo):
        B, Sq, D = x.shape
        Hq, Dh = 32, 192
        Hkv, Sk = k_cache.shape[1], k_cache.shape[2]
        W = min(4096, max(256, Sk // 4))
        rep = Hq // Hkv
        q = (lambda x, *d: x.permute(*d))((x @ wq).reshape(B, Sq, Hq, Dh), 0, 2, 1, 3)
        k = (lambda x, n, axis: torch.repeat_interleave(x, n, dim=axis))(k_cache[:, :, Sk - W:, :], rep, axis=1)
        v = (lambda x, n, axis: torch.repeat_interleave(x, n, dim=axis))(v_cache[:, :, Sk - W:, :], rep, axis=1)
        scores = torch.einsum("bhqd,bhkd->bhqk", q, k) * (Dh ** -0.5)
        p = _softmax(scores, axis=-1)
        o = torch.einsum("bhqk,bhkd->bhqd", p, v)
        return (lambda x, *d: x.permute(*d))(o, 0, 2, 1, 3).reshape(B, Sq, Hq * Dh) @ wo

    def _B_ref(x, k_cache, v_cache, wq, wo):
        B, Sq, D = x.shape
        Hq, Dh = 32, 192
        Hkv, Sk = k_cache.shape[1], k_cache.shape[2]
        W = min(4096, max(256, Sk // 4))
        rep = Hq // Hkv
        q = (lambda x, *d: x.permute(*d))((x @ wq).reshape(B, Sq, Hq, Dh), 0, 2, 1, 3)
        k = (lambda x, n, axis: torch.repeat_interleave(x, n, dim=axis))(k_cache[:, :, Sk - W:, :], rep, axis=1)
        v = (lambda x, n, axis: torch.repeat_interleave(x, n, dim=axis))(v_cache[:, :, Sk - W:, :], rep, axis=1)
        scores = torch.einsum("bhqd,bhkd->bhqk", q, k) * (Dh ** -0.5)
        p = _softmax(scores, axis=-1)
        o = torch.einsum("bhqk,bhkd->bhqd", p, v)
        return (lambda x, *d: x.permute(*d))(o, 0, 2, 1, 3).reshape(B, Sq, Hq * Dh) @ wo

    a = _A_ref(A_x, A_k_cache, A_v_cache, A_wq, A_wo)
    b = _B_ref(B_x, B_k_cache, B_v_cache, B_wq, B_wo)
    return torch.concatenate([a, b], axis=-1)
```

```python
import sys, json
KNAME = "concat_heads__sliding_block_cached__sliding_block_cached__decode_kernel"

def gen(dk=5, dq=5, dn=3, dhi=4, dlo=2, dw=3, dw2=4, pubs=(9, 12, 15, 18, 21, 24), sense=(24,), apply_=(28,), thi=1.5, tlo=1.5, group=8, flags="nt", ctl=1, pubw=4, qk=0, lay=(24576, 196608, 3072), rot=None):
    L = []; e = L.append
    e(f"; @launch grid=(256,1,1) block=(512,1,1) lds=64")
    e('.amdgcn_target "amdgcn-amd-amdhsa--gfx950"'); e(".text"); e(f".globl {KNAME}"); e(".p2align 8"); e(f".type {KNAME},@function"); e(f"{KNAME}:")
    e("s_cmp_ge_u32 s2, 256"); e("s_cbranch_scc1 L_end"); e("s_memrealtime s[40:41]")
    e("s_and_b32 s37, s2, 1"); e("s_lshr_b32 s34, s2, 3"); e("s_bfe_u32 s35, s2, 0x20001")
    e("s_mul_i32 s3, s37, 40"); e("s_add_u32 s4, s0, s3"); e("s_addc_u32 s5, s1, 0")
    e("s_load_dwordx4 s[8:11], s[4:5], 8"); e("s_load_dwordx4 s[12:15], s[4:5], 24"); e("s_load_dwordx2 s[38:39], s[0:1], 96"); e("s_load_dwordx2 s[72:73], s[0:1], 88")
    e("v_lshrrev_b32 v1, 6, v0"); e("s_nop 0"); e("v_readfirstlane_b32 s36, v1"); e("v_and_b32 v0, 63, v0")
    e("v_lshrrev_b32 v1, 3, v0"); e("v_and_b32 v2, 7, v0"); e("v_lshlrev_b32 v40, 2, v2"); e("v_lshlrev_b32 v2, 4, v2")
    e("v_mul_u32_u24 v3, 384, v1"); e("v_add_u32 v3, v3, v2")
    e("v_mul_u32_u24 v4, 12288, v1"); e("v_add_u32 v4, v4, v2")
    e("v_lshrrev_b32 v1, 4, v0"); e("v_and_b32 v2, 15, v0"); e("v_lshlrev_b32 v2, 4, v2"); e("v_mul_u32_u24 v5, 1280, v1"); e("v_add_u32 v5, v5, v2")
    e("v_mov_b32 v41, 0"); e("v_mov_b32 v42, 1"); e("ds_write_b32 v41, v42")
    e("s_waitcnt lgkmcnt(0)"); e("s_barrier")
    e("s_mul_i32 s42, s34, 3145728"); e("s_add_u32 s42, s42, 2359296")
    e("s_add_u32 s16, s8, s42"); e("s_addc_u32 s17, s9, 0"); e("s_mov_b32 s18, 786432"); e("s_mov_b32 s19, 0x20000")
    e("s_add_u32 s20, s10, s42"); e("s_addc_u32 s21, s11, 0"); e("s_mov_b32 s22, 786432"); e("s_mov_b32 s23, 0x20000")
    e(f"s_mul_i32 s84, s36, {lay[0]}"); e(f"s_mul_i32 s43, s35, {lay[1]}"); e("s_add_u32 s84, s84, s43")
    r = rot or (0, 0, 0, 0)
    e(f"s_mul_i32 s85, s34, {r[0]}"); e(f"s_mul_i32 s43, s35, {r[1]}"); e("s_add_u32 s85, s85, s43")
    e(f"s_mul_i32 s43, s36, {r[2]}"); e("s_add_u32 s85, s85, s43"); e(f"s_mul_i32 s43, s37, {r[3]}"); e("s_add_u32 s85, s85, s43")
    e("s_mul_i32 s42, s35, 1966080"); e("s_mul_i32 s43, s34, 384"); e("s_add_u32 s42, s42, s43")
    e("s_add_u32 s24, s12, s42"); e("s_addc_u32 s25, s13, 0"); e(f"s_mov_b32 s26, {159*12288+384}"); e("s_mov_b32 s27, 0x20000")
    e("s_mul_i32 s42, s34, 245760"); e("s_mul_i32 s43, s35, 61440"); e("s_add_u32 s42, s42, s43")
    e("s_add_u32 s28, s14, s42"); e("s_addc_u32 s29, s15, 0"); e("s_mov_b32 s30, 61440"); e("s_mov_b32 s31, 0x20000")
    e("s_mov_b32 s74, 4096"); e("s_mov_b32 s75, 0x20000")
    e("s_lshl_b32 s76, s34, 7"); e("s_and_b32 s77, s2, 7"); e("s_lshl_b32 s77, s77, 2"); e("s_add_u32 s77, s77, s76")
    if group == 4:
        e("s_lshl_b32 s77, s37, 6"); e("s_add_u32 s76, s76, s77")
    e("s_add_u32 s80, s72, s76"); e("s_addc_u32 s81, s73, 0")
    e(f"s_mov_b32 s79, {pubs[0]}"); e(f"s_mov_b32 s83, {pubs[1]-pubs[0]}")
    e("s_mov_b32 s78, 1")
    cnt = [0]
    def ld(va, srd, d, off=0, moded=False):
        if moded and ctl:
            n = cnt[0]
            e(f"s_waitcnt vmcnt({dhi-1})"); e("s_cmp_eq_u32 s78, 2"); e(f"s_cbranch_scc1 L_i{n}")
            e(f"s_waitcnt vmcnt({dn-1})"); e("s_cmp_eq_u32 s78, 1"); e(f"s_cbranch_scc1 L_i{n}")
            e(f"s_waitcnt vmcnt({dlo-1})"); e(f"L_i{n}:")
        else:
            e(f"s_waitcnt vmcnt({d-1})")
        r = 64 + 4 * (cnt[0] % 12); cnt[0] += 1
        e(f"buffer_load_dwordx4 v[{r}:{r+3}], {va}, {srd}, s45 offen offset:{off} {flags}")
    for r in range(8):
        e(f"s_add_u32 s46, s36, {r*8}"); e("s_mul_i32 s45, s46, 21846"); e("s_lshr_b32 s45, s45, 16"); e("s_mul_i32 s48, s45, 3"); e("s_sub_u32 s46, s46, s48")
        e("s_mul_i32 s45, s45, 98304"); e("s_lshl_b32 s46, s46, 7"); e("s_add_u32 s45, s45, s46")
        ld("v4", "s[24:27]", dq)
        if r == 0: e("s_memrealtime s[50:51]")
    for i in range(48):
        gq, j = divmod(i % 24, 3)
        if j == 0:
            e(f"s_add_u32 s45, s85, {gq}"); e("s_and_b32 s45, s45, 7"); e(f"s_mul_i32 s45, s45, {lay[2]}"); e("s_add_u32 s45, s45, s84")
        if ctl and i in pubs:
            e(f"s_cmp_lg_u32 s36, {pubw}"); e(f"s_cbranch_scc1 L_p{i}")
            prev = max([p for p in pubs if p < i], default=0)
            e(f"s_atomic_add s{79 if prev == 0 else 83}, s[80:81], 0")
            e(f"L_p{i}:")
        for s_, a_ in zip(sense, apply_):
            if ctl and i == s_:
                e(f"s_cmp_eq_u32 s36, {pubw}"); e(f"s_cbranch_scc1 L_ns{i}"); e("s_mov_b32 s82, 0"); e("s_atomic_add s82, s[80:81], 0 glc"); e(f"L_ns{i}:")
            if ctl and i == a_:
                e(f"s_cmp_eq_u32 s36, {pubw}"); e(f"s_cbranch_scc1 L_na{i}")
                e("s_waitcnt lgkmcnt(0)")
                e("s_mov_b32 s78, 1")
                e(f"s_cmp_ge_u32 s82, {int(group*(s_+thi))}"); e("s_cselect_b32 s78, 2, s78")
                e(f"s_cmp_le_u32 s82, {max(0,int(group*(s_-tlo)))}"); e("s_cselect_b32 s78, 0, s78")
                e("v_mov_b32 v45, s78"); e("ds_write_b32 v41, v45")
                e(f"s_branch L_nb{i}"); e(f"L_na{i}:")
                e("ds_read_b32 v46, v41"); e("s_waitcnt lgkmcnt(0)"); e("v_readfirstlane_b32 s78, v46"); e("s_nop 3")
                e(f"L_nb{i}:")
        if qk and 37 <= i < 41:
            for _ in range(qk // 4 // 32 * 8): e("v_add_f32 v60, v61, v62")
        ld("v3", "s[16:19]" if i < 24 else "s[20:23]", dk if i < 24 else dn, 128 * j, moded=i >= apply_[0])
        if i == dk: e("s_memrealtime s[60:61]")
        if i == 24 + dn: e("s_memrealtime s[62:63]")
    e("s_barrier")
    e("s_cmp_ge_u32 s36, 5"); e("s_cbranch_scc1 L_nowo")
    e("s_lshl_b32 s45, s36, 8")
    for rg in range(12):
        ld("v5", "s[28:31]", dw if rg < 3 else dw2)
        if rg == 3: e("s_memrealtime s[64:65]")
        e("s_add_u32 s45, s45, 5120")
    e("s_branch L_fin")
    e("L_nowo:")
    e("s_waitcnt vmcnt(0)")
    e("s_memrealtime s[64:65]")
    e("L_fin:")
    e("s_waitcnt vmcnt(0)")
    e("s_memrealtime s[52:53]"); e("s_getreg_b32 s54, hwreg(HW_REG_XCC_ID)"); e("s_waitcnt lgkmcnt(0)")
    e("v_mov_b32 v8, s40"); e("v_mov_b32 v9, s50"); e("v_mov_b32 v10, s52"); e("s_and_b32 s54, s54, 15"); e("s_lshl_b32 s54, s54, 24"); e("v_mov_b32 v11, s54")
    e("s_mul_i32 s46, s2, 16"); e("s_add_u32 s46, s46, s36"); e("s_lshl_b32 s46, s46, 4"); e("v_mov_b32 v1, s46")
    e("v_cmp_eq_u32 vcc, 0, v0"); e("s_and_saveexec_b64 s[56:57], vcc")
    e("global_store_dwordx4 v1, v[8:11], s[38:39]")
    e("v_mov_b32 v12, s60"); e("v_mov_b32 v13, s62"); e("v_mov_b32 v14, s64"); e("v_mov_b32 v15, s78"); e("v_add_u32 v1, 0x10000, v1")
    e("global_store_dwordx4 v1, v[12:15], s[38:39]")
    e("s_waitcnt vmcnt(0)"); e("L_end:"); e("s_endpgm")
    e('.section .rodata,"a"'); e(".p2align 6"); e(f".amdhsa_kernel {KNAME}")
    for l in ("next_free_vgpr 256", "next_free_sgpr 88", "accum_offset 256", "group_segment_fixed_size 0", "kernarg_size 104", "user_sgpr_count 2", "user_sgpr_kernarg_segment_ptr 1", "system_sgpr_workgroup_id_x 1"):
        e("  .amdhsa_" + l)
    e(".end_amdhsa_kernel")
    return "\n".join(L) + "\n"

if __name__ == "__main__":
    from build import build
    for name, kw in json.loads(sys.argv[1]).items():
        open(f"{name}.s", "w").write(gen(**kw)); print(build(f"{name}.s"))
```

```python
import sys, json, struct, math
KNAME = "concat_heads__sliding_block_cached__sliding_block_cached__decode_kernel"

HEADER = """; Fused two-branch sliding-window decode attention (q-proj, QK^T, softmax, PV, out-proj) in one launch.
; 256 workgroups (one per CU) x 8 waves.  Workgroup = (branch, head, quarter c): a block of wq rows, 512 keys of K and V,
;   x*wq, p*V and o*wo: MFMA 16x16x32 whose A operand is a one-hot selector times the row coefficient, so row-major
; Kernarg: 0 A_x, 8 A_k, 16 A_v, 24 A_wq, 32 A_wo, 40 B_x, 48 B_k, 56 B_v, 64 B_wq, 72 B_wo, 80 out, 88 debug, 96 ws
"""

L_RED = 0
L_QB = 12288
L_MX = 12800
L_LS = 12832
L_OB = 12864
L_SYNC = 12992
L_FIN = 13056
L_OWN = 14080
LDS_BYTES = 14336
W_Q = 0
W_O = 768
W_GO = 768 + 240
W_Y = 1536
W_STAMP = 0x200000

vLANE, vKV, vWQ, vX, vYA, vOBA, vWO, vRW, vG16, vQR = range(10)
vM = 10
vT0, vT1 = 14, 15
vQ = 16
vS = 28
vACC = 36
vT = 48
vK = 64
vV = 160
vMC = vT + 14
sK, sV, sWQ, sWO, sX, sWS, sDBG, sOUT = 16, 20, 24, 28, 32, 36, 40, 44
sHEAD, sC, sBR, sHH, sWAVE = 54, 55, 56, 57, 58
sG2, sG4, sG6 = 59, 60, 61
sQ1, sQ2, sQ3 = 62, 63, 3
sO1, sO2 = 64, 65
sC1 = 66
sSPIN = 67
sA, sB, sD = 68, 69, 70
sCHK = 71
sPROD = 72
sG, sXO = 73, 74
sBLK = 75
sSTAMP = 76
sM6, sOW, sOX = 4, 6, 8


def srd(n):
    return f"s[{n}:{n+3}]"


def vr(n, k=4):
    return f"v[{n}:{n+k-1}]"


class Emitter:
    def __init__(self, P):
        self.L = []
        self.P = P
        self.q = []
        self.pend = []

    def e(self, s):
        self.L.append("    " + s)

    def c(self, s):
        self.L.append("    ; " + s)

    def label(self, s):
        self.L.append(s + ":")

    def vm(self, tag, text):
        self.e(text)
        self.q.append(tag)

    def waitn(self, n):
        if len(self.q) > n:
            self.e(f"s_waitcnt vmcnt({n})")
            self.q = self.q[len(self.q) - n:] if n else []

    def wait_for(self, tag):
        if tag in self.q:
            self.waitn(len(self.q) - 1 - self.q.index(tag))

    def issue(self, n=1):
        for _ in range(n):
            if self.pend:
                t, s = self.pend.pop(0)
                self.vm(t, s)

    def topup(self, d):
        while self.pend and len(self.q) < d:
            self.issue()

    def pace_until(self, tag, d):
        acc = 0.5
        while any(t == tag for t, _ in self.pend):
            acc += d - int(d)
            di = int(d) + int(acc)
            acc -= int(acc)
            self.waitn(di - 1)
            self.issue()

    def state(self):
        return (list(self.q), list(self.pend))

    def set_state(self, st):
        self.q, self.pend = list(st[0]), list(st[1])

    def stamp(self, i):
        if self.P.get("pad") and self.P.get("padat") == i:
            self.e("s_memrealtime s[76:77]")
        if self.P.get("diag") == 1 or (self.P.get("diag") == 2 and i in (0, 12)):
            self.e(f"s_memrealtime s[{sSTAMP+2*i}:{sSTAMP+2*i+1}]")
        if self.P.get("diag") == 3 and i in (0, 8, 9, 10, 11, 12):
            self.e(f"s_memtime s[{sSTAMP+2*i}:{sSTAMP+2*i+1}]")


def gen(**P):
    D = P.get("D", 3)
    DK = P.get("DK", 5)
    DV = P.get("DV", 4)
    PROF = P.get("prof", [[24, DV]])
    DQ = P.get("DQ", 5)
    D5 = P.get("D5", DK + 1)
    D6 = P.get("D6", DK)
    DW = P.get("DW", 3)
    DS = P.get("DS", D)
    QS = P.get("QS", [0, 1, 2, 3])
    G = P.get("G", "half")
    HALF = G == "half"
    if HALF:
        G = [3, 3, 3, 3]
    else:
        assert sum(G) == 10 and min(G) >= 1 and max(G) <= 4
    NT = P.get("nt", "nt")
    wmap = P.get("wmap", 2)
    B2POS = P.get("b2pos", 13)
    SPIN = P.get("spin", 400000)
    BLK = P.get("blk", 4096)
    W_END = 256 * BLK
    g = Emitter(P)
    e, c = g.e, g.c

    def mask(lo, hi):
        e(f"s_mov_b32 exec_lo, {lo}")
        e(f"s_mov_b32 exec_hi, {hi}")

    def selector(dst, src):
        for r in range(4):
            e(f"v_and_b32 v{dst+r}, v{src}, v{vM+r}")

    def mfma(d, a, b, first):
        e(f"v_mfma_f32_16x16x32_bf16 {vr(d)}, {vr(a)}, {vr(b)}, {'0' if first else vr(d)}")

    def write_partial(cnt):
        e(f"v_mov_b32 v{vT0}, 0")
        e(f"v_mov_b32 v{vT1}, 1")
        mask("0x00ff00ff", "0xff00ff00")
        e("s_nop 3")
        for j in range(3):
            e(f"ds_write_b128 v{vRW}, {vr(vACC+4*j)} offset:{L_RED+256*j}")
        e("s_mov_b64 exec, 1")
        e(f"ds_add_u32 v{vT0}, v{vT1} offset:{L_SYNC+4*cnt}")
        e("s_mov_b64 exec, -1")

    def lds_wait(name, idx, target, behind=(), sleep=0, off=None):
        e(f"v_mov_b32 v{vT0}, 0")
        e(f"s_mov_b32 s{sSPIN}, {SPIN*16}")
        if sleep:
            e(f"s_branch {name}_t")
        g.label(name)
        if sleep:
            e(f"s_sleep {sleep}")
            g.label(name + "_t")
        e(f"ds_read_b32 v{vT1}, v{vT0} offset:{L_SYNC+4*idx if off is None else off}")
        for b in behind:
            e(b)
        e(f"s_sub_u32 s{sSPIN}, s{sSPIN}, 1")
        e(f"s_cbranch_scc1 {name}_x")
        e("s_waitcnt lgkmcnt(0)")
        e(f"v_cmp_gt_u32 vcc, {target}, v{vT1}")
        e(f"s_cbranch_vccnz {name}")
        g.label(name + "_x")

    def lds_set(idx):
        e(f"v_mov_b32 v{vT0}, 0")
        e(f"v_mov_b32 v{vT1}, 1")
        e(f"ds_write_b32 v{vT0}, v{vT1} offset:{L_SYNC+4*idx}")

    def check(r0, n):
        regs = [r0 + i for i in range(n)]
        e(f"v_max3_u32 v{vT1}, v{regs[0]}, v{regs[1]}, v{regs[2]}")
        rest = regs[3:]
        while len(rest) >= 2:
            e(f"v_max3_u32 v{vT1}, v{vT1}, v{rest[0]}, v{rest[1]}")
            rest = rest[2:]
        if rest:
            e(f"v_max_u32 v{vT1}, v{vT1}, v{rest[0]}")
        e(f"v_cmp_eq_u32 vcc, -1, v{vT1}")

    def poll(name, loads, r0, first_wait, sleep=0, thresh=0):
        e(f"s_mov_b32 s{sSPIN}, {SPIN}")
        e(f"s_waitcnt vmcnt({first_wait})")
        g.label(name)
        check(r0, 4 * len(loads))
        e(f"s_cbranch_vccz {name}_ok")
        e("s_mov_b64 exec, vcc")
        if sleep and thresh:
            e(f"s_bcnt1_i32_b64 s{sG}, vcc")
            e(f"s_cmp_le_u32 s{sG}, {thresh}")
            e(f"s_cbranch_scc1 {name}_go")
            e(f"s_sleep {sleep}")
            g.label(name + "_go")
        elif sleep:
            e(f"s_sleep {sleep}")
        for l in loads:
            e(l)
        e(f"s_sub_u32 s{sSPIN}, s{sSPIN}, 1")
        e("s_waitcnt vmcnt(0)")
        e(f"s_cbranch_scc0 {name}")
        g.label(name + "_ok")

    def counter_wait(name, reg, load):
        e(f"s_mov_b32 s{sSPIN}, {SPIN}")
        g.label(name)
        e(f"v_cmp_gt_u32 vcc, 4, v{reg}")
        e(f"s_cbranch_vccz {name}_ok")
        e("s_sleep 16")
        e(load)
        e(f"s_sub_u32 s{sSPIN}, s{sSPIN}, 1")
        e("s_waitcnt vmcnt(0)")
        e(f"s_cbranch_scc0 {name}")
        g.label(name + "_ok")

    def rows_transpose_reduce(a, fill=((), ())):
        for f in fill[0]:
            e(f)
        if len(fill[0]) < 2:
            e(f"s_nop {1-len(fill[0])}")
        e(f"v_permlane32_swap_b32 v{a}, v{a+1}")
        e(f"v_permlane32_swap_b32 v{a+2}, v{a+3}")
        e(f"v_add_f32 v{a}, v{a}, v{a+1}")
        e(f"v_add_f32 v{a+2}, v{a+2}, v{a+3}")
        for f in fill[1]:
            e(f)
        if len(fill[1]) < 2:
            e(f"s_nop {1-len(fill[1])}")
        e(f"v_permlane16_swap_b32 v{a}, v{a+2}")
        e(f"v_add_f32 v{a}, v{a}, v{a+2}")

    def other_loads():
        e("s_load_dwordx2 s[6:7], s[4:5], 0")
        e("s_load_dwordx4 s[8:11], s[4:5], 8")
        e("s_load_dwordx4 s[48:51], s[0:1], 80")
        e("s_load_dwordx2 s[52:53], s[0:1], 96")

    def reset_block(label):
        c("wave 5: reset this workgroup's hand-off block")
        e(f"s_cmp_lg_u32 s{sWAVE}, {99 if P.get('noreset') else 5}")
        e(f"s_cbranch_scc1 {label}")
        for r in range(4):
            e(f"v_mov_b32 v{vACC+r}, -1")
        e(f"v_lshlrev_b32 v{vT0}, 4, v{vLANE}")
        for k in range(4):
            e(f"buffer_store_dwordx4 {vr(vACC)}, v{vT0}, {srd(sWS)}, s{sBLK} offen offset:{1024*k} {P.get('rflags', 'sc1')}")

    def lds_init():
        for r in range(4):
            e(f"v_mov_b32 v{vT+12+r}, 0")
        e(f"ds_write_b128 v{vT+12}, {vr(vT+12)} offset:{L_SYNC}")
        if P.get("last"):
            e(f"ds_write_b32 v{vT+12}, v{vT+12} offset:{L_SYNC+16}")
        e(f"v_and_b32 v{vT+10}, 3, v{vLANE}")
        e(f"v_lshlrev_b32 v{vT+10}, 5, v{vT+10}")
        e(f"ds_write_b32 v{vT+10}, v{vT+12} offset:{L_OB+24}")
        e(f"v_lshlrev_b32 v{vT+10}, 2, v{vLANE}")
        e(f"v_mov_b32 v{vT+9}, -1")
        e(f"ds_write_b32 v{vT+10}, v{vT+9} offset:{L_OWN}")

    e("s_cmp_ge_u32 s2, 256")
    e("s_cbranch_scc1 L_end")
    g.stamp(0)
    if P.get("pad"):
        e("s_memrealtime s[76:77]")
    if wmap == 2:
        e(f"s_and_b32 s{sBR}, s2, 1")
        e(f"s_lshr_b32 s{sHEAD}, s2, 3")
        e(f"s_bfe_u32 s{sC}, s2, 0x20001")
    elif wmap == 3:
        e(f"s_and_b32 s{sBR}, s2, 7")
        e(f"s_bcnt1_i32_b32 s{sBR}, s{sBR}")
        e(f"s_and_b32 s{sBR}, s{sBR}, 1")
        e(f"s_lshr_b32 s{sHEAD}, s2, 3")
        e(f"s_bfe_u32 s{sC}, s2, 0x20001")
    elif wmap == 0:
        e(f"s_bfe_u32 s{sBR}, s2, 0x10005")
        e(f"s_and_b32 s{sHEAD}, s2, 31")
        e(f"s_lshr_b32 s{sC}, s2, 6")
    e(f"s_mul_i32 s{sA}, s{sBR}, 40")
    e(f"s_add_u32 s4, s0, s{sA}")
    e("s_addc_u32 s5, s1, 0")
    e("s_load_dwordx4 s[12:15], s[4:5], 24")
    if P.get("early", 2) != 1:
        other_loads()
    e(f"v_lshrrev_b32 v{vT+3}, 3, v0")
    e(f"v_and_b32 v{vT+1}, 7, v0")
    e(f"v_lshlrev_b32 v{vQR}, 4, v{vT+1}")
    e(f"s_movk_i32 s{sB}, 12288")
    e(f"v_mad_u32_u24 v{vWQ}, v{vT+3}, s{sB}, v{vQR}")
    if HALF:
        e(f"s_mul_i32 s{sA}, s{sC}, 1966080")
        e(f"s_mov_b32 s{sWQ+2}, {159*12288+384}")
    else:
        gpack = sum(G[i] << (4 * i) for i in range(4)) | sum(sum(G[:i]) << (16 + 4 * i) for i in range(4))
        e(f"s_lshl_b32 s{sA}, s{sC}, 2")
        e(f"s_lshr_b32 s{sA}, {hex(gpack)}, s{sA}")
        e(f"s_and_b32 s{sG}, s{sA}, 15")
        e(f"s_bfe_u32 s{sA}, s{sA}, 0x40010")
        e(f"s_lshl_b32 s{sXO}, s{sA}, 7")
        e(f"s_mul_i32 s{sA}, s{sA}, 786432")
        e(f"s_mul_i32 s{sWQ+2}, s{sG}, 786432")
        e(f"s_sub_u32 s{sWQ+2}, s{sWQ+2}, {12288-384}")
    e(f"s_mul_i32 s{sB}, s{sHEAD}, 384")
    e(f"s_add_u32 s{sA}, s{sA}, s{sB}")
    e(f"s_mov_b32 s{sWQ+3}, 0x20000")
    e(f"s_mov_b32 s{sQ1}, 786432")
    e(f"v_lshrrev_b32 v{vT0}, 6, v0")
    e(f"v_and_b32 v{vLANE}, 63, v0")
    e(f"v_readfirstlane_b32 s{sWAVE}, v{vT0}")
    e(f"s_lshl_b32 s{sHH}, s{sBR}, 5")
    e(f"s_add_u32 s{sHH}, s{sHH}, s{sHEAD}")
    e(f"s_lshl_b32 s{sBLK}, s{sHH}, 2")
    e(f"s_add_u32 s{sBLK}, s{sBLK}, s{sC}")
    e(f"s_mul_i32 s{sBLK}, s{sBLK}, {BLK}")
    e(f"s_mov_b32 s{sWS+2}, {W_END}")
    e(f"s_mov_b32 s{sWS+3}, 0x20000")
    if not P.get("early", 2):
        lds_init()
    e("s_waitcnt lgkmcnt(0)")
    e(f"s_add_u32 s{sWQ}, s12, s{sA}")
    e(f"s_addc_u32 s{sWQ+1}, s13, 0")
    Ql = []
    for gq in range(4):
        for j in range(3):
            so = ["0", f"s{sQ1}", f"s{sQ2}", f"s{sQ3}"][gq]
            va = vACC + 12 + 2 if HALF and gq == 2 else vWQ
            Ql.append((f"wq{gq}{j}", f"buffer_load_dwordx4 {vr(vV+12*gq+4*j)}, v{va}, {srd(sWQ)}, {so} offen offset:{128*j} {NT}"))
    NQ0 = min(P.get("nq0", 3), 3 * min(min(G), 2))
    g.pend = Ql[:NQ0]
    g.issue(NQ0)
    g.stamp(1)
    e(f"s_mov_b32 s{sWS}, s52")
    e(f"s_mov_b32 s{sWS+1}, s53")
    if P.get("ereset", 0):
        reset_block("L_rst")
        g.label("L_rst")
    if P.get("early", 2) == 1:
        other_loads()
    if P.get("early", 2):
        lds_init()
    if HALF:
        e(f"s_mul_i32 s{sXO}, s{sC}, 320")
    if P.get("early", 2):
        e("s_waitcnt lgkmcnt(0)")
    e(f"s_mov_b32 s{sX}, s6")
    e(f"s_mov_b32 s{sX+1}, s7")
    e(f"s_mov_b32 s{sX+2}, 1284")
    e(f"s_mov_b32 s{sX+3}, 0x20000")
    e(f"v_lshlrev_b32 v{vX}, 1, v{vT+3}")
    g.vm("x0", f"buffer_load_ushort v{vT+8}, v{vX}, {srd(sX)}, s{sXO} offen")
    e("s_barrier")
    c("LDS sync words are initialised; build the remaining descriptors and lane addresses")
    e(f"s_mov_b32 s{sQ2}, {2*786432}")
    e(f"s_mov_b32 s{sQ3}, {3*786432}")
    e(f"s_mul_i32 s{sA}, s{sHEAD}, 3145728")
    e(f"s_mul_i32 s{sB}, s{sC}, 196608")
    e(f"s_add_u32 s{sA}, s{sA}, s{sB}")
    e(f"s_add_u32 s{sA}, s{sA}, 2359296")
    e(f"s_add_u32 s{sK}, s8, s{sA}")
    e(f"s_addc_u32 s{sK+1}, s9, 0")
    e(f"s_mov_b32 s{sK+2}, 196608")
    e(f"s_mov_b32 s{sK+3}, 0x20000")
    e(f"s_add_u32 s{sV}, s10, s{sA}")
    e(f"s_addc_u32 s{sV+1}, s11, 0")
    e(f"s_mov_b32 s{sV+2}, 196608")
    e(f"s_mov_b32 s{sV+3}, 0x20000")
    e(f"s_lshl_b32 s{sPROD}, s{sHEAD}, 2")
    e(f"s_add_u32 s{sPROD}, s{sPROD}, s{sC}")
    e(f"s_mul_i32 s{sA}, s{sPROD}, 61440")
    e(f"s_add_u32 s{sWO}, s14, s{sA}")
    e(f"s_addc_u32 s{sWO+1}, s15, 0")
    e(f"s_mov_b32 s{sWO+2}, 61440")
    e(f"s_mov_b32 s{sWO+3}, 0x20000")
    e(f"s_mov_b32 s{sDBG}, s50")
    e(f"s_mov_b32 s{sDBG+1}, s51")
    e(f"s_mov_b32 s{sDBG+2}, 256")
    e(f"s_mov_b32 s{sDBG+3}, 0x20000")
    e(f"s_mov_b32 s{sOUT}, s48")
    e(f"s_mov_b32 s{sOUT+1}, s49")
    e(f"s_mov_b32 s{sOUT+2}, 2564")
    e(f"s_mov_b32 s{sOUT+3}, 0x20000")
    e(f"s_mov_b32 s{sG2}, 6144")
    e(f"s_mov_b32 s{sG4}, 12288")
    e(f"s_mov_b32 s{sG6}, 18432")
    e(f"s_mov_b32 s{sO1}, 5120")
    e(f"s_mov_b32 s{sO2}, 10240")
    f32 = lambda x: hex(struct.unpack("<I", struct.pack("<f", x))[0])
    RND = P.get("rnd", 1)
    e(f"s_mov_b32 s{sC1}, {f32(math.log2(math.e) * (1 if RND else 192 ** -0.5))}")
    e(f"s_cmp_lt_u32 s{sPROD}, 20")
    e(f"s_cselect_b32 s{sCHK}, {0 if P.get('nocnt') else 's%d' % sWAVE}, 0")
    e(f"s_lshl_b32 s{sA}, s{sC}, 4")
    e(f"s_mov_b64 s[{sOW}:{sOW+1}], 0x1fff")
    e(f"s_lshl_b64 s[{sOW}:{sOW+1}], s[{sOW}:{sOW+1}], s{sA}")
    e(f"s_mov_b32 s{sM6}, 0x1fff1fff")
    e(f"s_mov_b32 s{sM6+1}, 0x1fff1fff")
    e(f"s_andn2_b64 s[{sM6}:{sM6+1}], s[{sM6}:{sM6+1}], s[{sOW}:{sOW+1}]")
    ROT = P.get("rot")
    sROT = [48, 49, 50, 51, 52, 53, 12, 13]
    if ROT:
        c("each wave walks its eight key groups from a different starting group")
        e(f"s_mul_i32 s{sA}, s{sHEAD}, {ROT[0]}")
        e(f"s_mul_i32 s{sB}, s{sC}, {ROT[1]}")
        e(f"s_add_u32 s{sA}, s{sA}, s{sB}")
        e(f"s_mul_i32 s{sB}, s{sWAVE}, {ROT[2]}")
        e(f"s_add_u32 s{sA}, s{sA}, s{sB}")
        e(f"s_mul_i32 s{sB}, s{sBR}, {ROT[3]}")
        e(f"s_add_u32 s{sA}, s{sA}, s{sB}")
        for gq in range(8):
            e(f"s_add_u32 s{sB}, s{sA}, {gq}")
            e(f"s_and_b32 s{sB}, s{sB}, 7")
            e(f"s_mul_i32 s{sROT[gq]}, s{sB}, 3072")
    e(f"v_lshrrev_b32 v{vT}, 3, v{vLANE}")
    e(f"s_mul_i32 s{sA}, s{sWAVE}, 24576")
    e(f"v_mul_u32_u24 v{vKV}, 384, v{vT}")
    e(f"v_add3_u32 v{vKV}, v{vKV}, v{vQR}, s{sA}")
    e(f"v_lshrrev_b32 v{vT+4}, 4, v{vLANE}")
    e(f"v_and_b32 v{vT+5}, 15, v{vLANE}")
    e(f"v_mul_u32_u24 v{vWO}, 15360, v{vT+4}")
    e(f"v_lshl_add_u32 v{vWO}, v{vT+5}, 4, v{vWO}")
    e(f"s_lshl_b32 s{sA}, s{sWAVE}, 8")
    e(f"v_add_u32 v{vWO}, s{sA}, v{vWO}")
    e(f"v_lshlrev_b32 v{vOBA}, 5, v{vT+4}")
    e(f"v_lshlrev_b32 v{vYA}, 5, v{vT+5}")
    e(f"v_and_b32 v{vT+6}, 16, v{vLANE}")
    e(f"s_lshl_b32 s{sA}, s{sWAVE}, 9")
    e(f"v_add3_u32 v{vYA}, v{vYA}, v{vT+6}, s{sA}")
    e(f"v_lshrrev_b32 v{vT+6}, 5, v{vLANE}")
    e(f"v_mul_u32_u24 v{vRW}, 768, v{vT+6}")
    e(f"v_lshl_add_u32 v{vRW}, v{vT+1}, 5, v{vRW}")
    e(f"v_and_b32 v{vT+6}, 1, v{vT+4}")
    e(f"v_lshl_add_u32 v{vRW}, v{vT+6}, 4, v{vRW}")
    e(f"s_mul_i32 s{sA}, s{sWAVE}, 1536")
    e(f"v_add_u32 v{vRW}, s{sA}, v{vRW}")
    e(f"v_mad_u32_u24 v{vG16}, v{vT+4}, 12, v{vT+5}")
    e(f"v_lshlrev_b32 v{vG16}, 4, v{vG16}")
    if HALF:
        c("third group: rows 128 + 4*wave + l/8 for lanes < 32, out of range (reads as zero) for the others")
        e(f"s_lshl_b32 s{sA}, s{sWAVE}, 2")
        e(f"v_add_u32 v{vT+6}, s{sA}, v{vT}")
        e(f"v_cmp_gt_u32 vcc, 32, v{vLANE}")
        e(f"v_mul_u32_u24 v{vT+2}, 12288, v{vT+6}")
        e(f"v_add_u32 v{vT+2}, v{vT+2}, v{vQR}")
        e(f"v_lshlrev_b32 v{vT+3}, 1, v{vT+6}")
        e(f"v_mov_b32 v{vT+7}, 0x7f000000")
        e(f"v_cndmask_b32 v{vT+2}, v{vT+7}, v{vT+2}, vcc")
        e(f"v_cndmask_b32 v{vT+3}, v{vT+7}, v{vT+3}, vcc")
    c("mask_r = ((l%8)/2 == r) ? (l&1 ? 0xffff0000 : 0xffff) : 0")
    e(f"v_and_b32 v{vT+6}, 1, v{vLANE}")
    e(f"v_lshlrev_b32 v{vT+6}, 4, v{vT+6}")
    e(f"v_mov_b32 v{vT+7}, 0xffff")
    e(f"v_lshlrev_b32 v{vT+7}, v{vT+6}, v{vT+7}")
    e(f"v_lshrrev_b32 v{vT+6}, 1, v{vT+1}")
    for r in range(4):
        e(f"v_cmp_eq_u32 vcc, {r}, v{vT+6}")
        e("s_nop 1")
        e(f"v_cndmask_b32 v{vM+r}, 0, v{vT+7}, vcc")

    if P.get("touch"):
        c("wave 7: warm the address translation of the V and wo ranges (values unused)")
        e(f"s_cmp_lg_u32 s{sWAVE}, 7")
        e("s_cbranch_scc1 L_notouch")
        e(f"v_lshlrev_b32 v{vT0}, {P['touch']}, v{vLANE}")
        e(f"buffer_load_dword v{vT+13}, v{vT0}, {srd(sV)}, 0 offen {NT}")
        e(f"buffer_load_dword v{vT+14}, v{vT0}, {srd(sWO)}, 0 offen {NT}")
        if P.get("touchk"):
            e(f"buffer_load_dword v{vT+12}, v{vT0}, {srd(sK)}, 0 offen {NT}")
        g.label("L_notouch")
    if P.get("ereset", 0):
        e(f"s_cmp_lg_u32 s{sWAVE}, {99 if P.get('noreset') else 5}")
        e("s_cbranch_scc1 L_noreset")
    else:
        reset_block("L_noreset")
    e(f"s_lshl_b32 s{sD}, s{sHH}, 2")
    e(f"v_mov_b32 v{vT+4}, 1")
    e("s_waitcnt vmcnt(0)")
    g.stamp(3)
    c("the reset is complete: count the workgroup in")
    e("s_mov_b64 exec, 1")
    e(f"buffer_atomic_add v{vT+4}, off, {srd(sDBG)}, s{sD} sc0")
    e("s_mov_b64 exec, -1")
    e("s_branch L_w5_wq")
    g.label("L_noreset")

    def kvload(name, sr, base, gq, j):
        so = ["0", f"s{sG2}", f"s{sG4}", f"s{sG6}"][gq // 2]
        off = (gq % 2) * 3072 + 128 * j
        if ROT:
            so, off = f"s{sROT[gq]}", 128 * j
        return (f"{name}{gq}{j}", f"buffer_load_dwordx4 {vr(base+12*gq+4*j)}, v{vKV}, {srd(sr)}, {so} offen offset:{off} {NT}")
    Kl = [kvload("k", sK, vK, gq, j) for gq in range(8) for j in range(3)]
    Vl = [kvload("v", sV, vV, gq, j) for gq in range(8) for j in range(3)]
    Ol = []
    for rg in range(12):
        so = ["0", f"s{sO1}", f"s{sO2}"][rg // 4]
        Ol.append((f"o{rg}", f"buffer_load_dwordx4 {vr(vK+32+4*rg)}, v{vWO}, {srd(sWO)}, {so} offen offset:{1280*(rg%4)} {NT}"))
    NK1 = int(math.ceil(DK))

    st0 = g.state()
    variants = sorted(set(G))

    def wq_phase(pre, q0, nk):
        for gv in variants[:-1]:
            e(f"s_cmp_eq_u32 s{sG}, {gv}")
            e(f"s_cbranch_scc1 {pre}{gv}")
        for gv in reversed(variants):
            g.label(f"{pre}{gv}")
            g.set_state((q0, Ql[NQ0:3 * gv] + Kl[:nk]))
            for gq in range(1, gv):
                g.vm(f"x{gq}", f"buffer_load_ushort v{vT+8+gq}, v{vT+3 if HALF and gq == 2 else vX}, {srd(sX)}, s{sXO} offen offset:{128*gq}")
            def refill():
                while g.pend and len([t for t in g.q if t[0] in "wk"]) < (DQ if g.pend[0][0].startswith("wq") else nk):
                    g.issue()
            refill()
            for gq in range(gv):
                g.wait_for(f"x{gq}")
                e(f"v_lshl_or_b32 v{vT+8+gq}, v{vT+8+gq}, 16, v{vT+8+gq}")
                selector(vQ + 4 * gq, vT + 8 + gq)
                refill()
                e("s_nop 1")
                for j in range(3):
                    g.wait_for(f"wq{gq}{j}")
                    mfma(vACC + 4 * j, vQ + 4 * gq, vV + 12 * gq + 4 * j, gq == 0)
                    refill()
            g.wait_for("atom")
            assert not g.pend
            write_partial(0)
            if gv != variants[0]:
                e(f"s_branch {pre}_done")
        g.label(f"{pre}_done")
        g.stamp(2)
        g.set_state(([t for t, _ in Kl[:nk]], Kl[nk:] + Vl))

    wq_phase("L_wq", st0[0], NK1)
    st1 = g.state()
    b2tag = Vl[B2POS - 1][0]
    if P.get("nox1"):
        lds_set(1)
    if P.get("nox1") != 1:
        e(f"s_cmp_eq_u32 s{sWAVE}, 6")
        e("s_cbranch_scc1 L_w6_x1")
    def pace_profile(dk):
        KV = Kl + Vl
        for upto, d in [(PROF[0][0], dk)] + [(PROF[i + 1][0] if i + 1 < len(PROF) else 24 + B2POS, PROF[i][1]) for i in range(len(PROF))]:
            g.pace_until(KV[min(upto, 24 + B2POS) - 1][0], d)
    pace_profile(DK)
    st_b2 = g.state()
    e("s_branch L_b2")

    g.label("L_w5_wq")
    wq_phase("L_wq5_", ["atom"], int(math.ceil(D5)))
    c("wave 5: the workgroup that was counted in last tells all four that the slots are ready")
    e(f"v_readfirstlane_b32 s{sB}, v{vT+4}")
    e(f"s_mul_i32 s{sA}, s{sHH}, {4*BLK}")
    e(f"v_mul_u32_u24 v{vT0}, {BLK}, v{vLANE}")
    e(f"s_and_b32 s{sB}, s{sB}, 3")
    e(f"s_cmp_lg_u32 s{sB}, 3")
    e("s_cbranch_scc1 L_w5_nogo")
    e("s_mov_b64 exec, 15")
    e(f"buffer_store_dword v{vT1}, v{vT0}, {srd(sWS)}, s{sA} offen offset:{W_GO} sc1")
    e("s_mov_b64 exec, -1")
    g.label("L_w5_nogo")
    c("publish the q partial")
    lds_wait("L_w5_rows", 0, 8)
    if P.get("diag") == 1:
        e("s_waitcnt lgkmcnt(0)")
    reads = [f"ds_read_b128 {vr(vV+4*p)}, v{vG16} offset:{L_RED+768*p}" for p in range(16)]
    issued = 0
    for p in range(0, 16, 2):
        while issued < 16 and issued - p < 14:
            e(reads[issued]); issued += 1
        e(f"s_waitcnt lgkmcnt({issued-p-2})")
        for h in (0, 2):
            e(f"v_pk_add_f32 {vr(vV+4*p+h,2)}, {vr(vV+4*p+h,2)}, {vr(vV+4*p+4+h,2)}")
    for st in (2, 4, 8):
        for p in range(0, 16, 2 * st):
            d = vT + 8 if st == 8 else vV + 4 * p
            for h in (0, 2):
                e(f"v_pk_add_f32 {vr(d+h,2)}, {vr(vV+4*p+h,2)}, {vr(vV+4*(p+st)+h,2)}")
    for r in range(4):
        e(f"v_min_u32 v{vT+8+r}, -2, v{vT+8+r}")
    mask("0x0fff0fff", "0x0fff0fff")
    e(f"buffer_store_dwordx4 {vr(vT+8)}, v{vG16}, {srd(sWS)}, s{sBLK} offen sc1")
    e("s_mov_b64 exec, -1")
    g.stamp(4)
    pace_profile(D5)
    c("wave 5 of a reducing workgroup: fetch the 32 counters of this branch")
    e(f"s_cmp_lg_u32 s{sCHK}, 5")
    e("s_cbranch_scc1 L_b2")
    e(f"s_lshl_b32 s{sA}, s{sBR}, 7")
    e(f"v_lshlrev_b32 v{vT0}, 2, v{vLANE}")
    e(f"v_and_b32 v{vT0}, 127, v{vT0}")
    e(f"buffer_load_dword v{vT+15}, v{vT0}, {srd(sDBG)}, s{sA} offen sc1")
    e("s_branch L_b2")

    c("wave 6: wait until the four workgroups of this head have reset their slots, gather q, distribute it")
    g.label("L_w6_x1")
    g.set_state(st1)
    e(f"s_mul_i32 s8, s{sHH}, {4*BLK}")
    for i in range(1, 4):
        e(f"s_add_u32 s{8+i}, s8, {BLK*i}")
    g.pace_until(Kl[P.get("cntpos", 12) - 1][0], D6)
    c("this workgroup's own reset is complete once wave 5 has added its q rows")
    lds_wait("L_w6_own_reset", 0, 8)
    goload = f"buffer_load_dword v{vT+4}, off, {srd(sWS)}, s{sBLK} offset:{W_GO} sc1"
    g.vm("cnt", goload)
    while g.q[0] != "cnt":
        g.waitn(len(g.q) - 1)
        g.issue()
    g.wait_for("cnt")
    e(f"s_mov_b32 s{sSPIN}, {SPIN}")
    g.label("L_w6_go")
    e(f"v_cmp_eq_u32 vcc, -1, v{vT+4}")
    e("s_cbranch_vccz L_w6_go_ok")
    e(goload)
    e(f"s_sub_u32 s{sSPIN}, s{sSPIN}, 1")
    e("s_waitcnt vmcnt(0)")
    e("s_cbranch_scc0 L_w6_go")
    g.label("L_w6_go_ok")
    g.stamp(3)
    e(f"v_lshrrev_b32 v{vT0}, 1, v{vG16}")
    qg = [f"buffer_load_dwordx4 {vr(vV+4*i)}, v{vG16}, {srd(sWS)}, s{8+i} offen sc1" for i in range(4)]
    g.issue()
    mask("0x0fff0fff", "0x0fff0fff")
    for i in range(4):
        g.vm(f"qg{i}", qg[i])
    e("s_mov_b64 exec, -1")
    while not g.q[0].startswith("qg") and g.pend[0][0].startswith("k"):
        g.waitn(len(g.q) - 1)
        g.issue()
    mask("0x0fff0fff", "0x0fff0fff")
    nyoung = len(g.q) - 1 - g.q.index("qg3")
    poll("L_w6_q", qg, vV, nyoung, P.get("qsleep", 0))
    g.q = g.q[len(g.q) - nyoung:] if nyoung else []
    g.stamp(4)
    mask("0x0fff0fff", "0x0fff0fff")
    for h in (0, 2):
        e(f"v_pk_add_f32 {vr(vV+h,2)}, {vr(vV+h,2)}, {vr(vV+4+h,2)}")
        e(f"v_pk_add_f32 {vr(vV+8+h,2)}, {vr(vV+8+h,2)}, {vr(vV+12+h,2)}")
    for h in (0, 2):
        e(f"v_pk_add_f32 {vr(vV+h,2)}, {vr(vV+h,2)}, {vr(vV+8+h,2)}")
    e(f"v_cvt_pk_bf16_f32 v{vT+12}, v{vV}, v{vV+1}")
    e(f"v_cvt_pk_bf16_f32 v{vT+13}, v{vV+2}, v{vV+3}")
    e(f"ds_write_b64 v{vT0}, {vr(vT+12,2)} offset:{L_QB}")
    e("s_mov_b64 exec, -1")
    lds_set(1)
    pace_profile(D6)
    assert g.pend == st_b2[1]

    g.set_state(([t for t, _ in Kl] + [t for t, _ in Vl[:B2POS]], st_b2[1]))
    g.label("L_b2")
    g.stamp(5)
    for gq in range(8):
        e(f"v_mov_b32 v{vS+gq}, 0")
    lds_wait("L_qwait", 1, 1, [f"ds_read_b128 {vr(vQ+4*j)}, v{vQR} offset:{L_QB+128*j}" for j in range(3)])
    g.stamp(6)
    g.wait_for("k72")
    if -1 in QS:
        g.waitn(DS - 1)
        g.issue()
    for j in range(3):
        for r in range(4):
            for gq in range(8 if not P.get("noqk") else 0):
                e(f"v_dot2c_f32_bf16 v{vS+gq}, v{vK+12*gq+4*j+r}, v{vQ+4*j+r}")
        if j in QS:
            g.waitn(DS - 1)
            g.issue()
    for ctl in ("quad_perm:[1,0,3,2]", "quad_perm:[2,3,0,1]", "row_half_mirror"):
        for gq in range(8):
            e(f"v_add_f32_dpp v{vS+gq}, v{vS+gq}, v{vS+gq} {ctl} row_mask:0xf bank_mask:0xf")
    if RND:
        c("the scores are a bf16 tensor before and after the 192^-0.5 scaling")
        for gq in range(8):
            e(f"v_cvt_pk_bf16_f32 v{vS+gq}, 0, v{vS+gq}")
        for gq in range(8):
            e(f"v_mul_f32 v{vS+gq}, {f32(192 ** -0.5)}, v{vS+gq}")
        for gq in range(8):
            e(f"v_cvt_pk_bf16_f32 v{vS+gq}, 0, v{vS+gq}")
    e(f"v_max3_f32 v{vT0}, v{vS}, v{vS+1}, v{vS+2}")
    e(f"v_max3_f32 v{vT1}, v{vS+3}, v{vS+4}, v{vS+5}")
    e(f"v_max3_f32 v{vT0}, v{vT0}, v{vS+6}, v{vS+7}")
    e(f"v_max_f32 v{vT0}, v{vT0}, v{vT1}")
    e(f"s_lshl_b32 s{sA}, s{sWAVE}, 2")
    e(f"v_mov_b32 v{vT}, s{sA}")
    e(f"v_max_f32_dpp v{vT0}, v{vT0}, v{vT0} row_ror:8 row_mask:0xf bank_mask:0xf")
    e("s_nop 1")
    e(f"v_max_f32_dpp v{vT0}, v{vT0}, v{vT0} row_bcast:15 row_mask:0xa bank_mask:0xf")
    e("s_nop 1")
    e(f"v_max_f32_dpp v{vT0}, v{vT0}, v{vT0} row_bcast:31 row_mask:0xc bank_mask:0xf")
    e("s_nop 0")
    e(f"v_readlane_b32 s{sA}, v{vT0}, 63")
    e(f"v_mov_b32 v{vMC}, s{sC1}")
    e("s_nop 0")
    e(f"v_mul_f32 v{vMC}, s{sA}, v{vMC}")
    e(f"ds_write_b32 v{vT}, v{vMC} offset:{L_MX}")
    g.stamp(7)
    for gq in range(8):
        e(f"v_fma_f32 v{vS+gq}, v{vS+gq}, s{sC1}, -v{vMC}")
    for gq in range(8):
        e(f"v_exp_f32 v{vS+gq}, v{vS+gq}")
    if 3 in QS:
        g.waitn(DS - 1)
        g.issue()
    e("s_nop 0")
    for gq in range(8):
        e(f"v_cvt_pk_bf16_f32 v{vT+4+gq}, v{vS+gq}, v{vS+gq}")
    for gq in range(8):
        selector(vK + 4 * gq, vT + 4 + gq)
    for a, b in ((0, 1), (2, 3), (4, 5), (6, 7), (0, 2), (4, 6), (0, 4)):
        e(f"v_add_f32 v{vS+a}, v{vS+a}, v{vS+b}")
    for ctl in ("row_ror:8 row_mask:0xf", "row_bcast:15 row_mask:0xa", "row_bcast:31 row_mask:0xc"):
        e("s_nop 1")
        e(f"v_add_f32_dpp v{vS}, v{vS}, v{vS} {ctl} bank_mask:0xf")
    mask("0", "0x80000000")
    e(f"ds_write_b32 v{vT}, v{vS} offset:{L_LS}")
    e("s_mov_b64 exec, -1")
    if 4 in QS:
        g.waitn(DS - 1)
        g.issue()
    c("byte selectors that place one bf16 of a pair at this lane's one-hot position (out-projection)")
    e(f"v_mov_b32 v{vT0}, 0x0c0c0c0c")
    e(f"v_mov_b32 v{vT1}, 0x01000100")
    e(f"v_mov_b32 v{vT+4}, 0x03020302")
    for r in range(4):
        e(f"v_bfi_b32 v{vQ+r}, v{vM+r}, v{vT1}, v{vT0}")
        e(f"v_bfi_b32 v{vQ+4+r}, v{vM+r}, v{vT+4}, v{vT0}")

    c("wave 5 of a reducing workgroup: every producer of this branch must have reset its slots before they are polled")
    e(f"s_cmp_lg_u32 s{sCHK}, 5")
    e("s_cbranch_scc1 L_chk_ok")
    e(f"s_lshl_b32 s{sA}, s{sBR}, 7")
    e(f"v_lshlrev_b32 v{vT0}, 2, v{vLANE}")
    e(f"v_and_b32 v{vT0}, 127, v{vT0}")
    nyoung = len([t for t in g.q if t.startswith("v") and [x for x, _ in Vl].index(t) >= B2POS])
    e(f"s_waitcnt vmcnt({nyoung})")
    counter_wait("L_chk", vT + 15, f"buffer_load_dword v{vT+15}, v{vT0}, {srd(sDBG)}, s{sA} offen sc1")

    def pv(i, d):
        gq, j = divmod(i, 3)
        t = f"v{gq}{j}"
        g.pace_until(t, d)
        g.wait_for(t)
        mfma(vACC + 4 * j, vK + 4 * gq, vV + 12 * gq + 4 * j, gq == 0)
        g.topup(d)

    WOPRE = P.get("wopre", 0)
    stP = g.state()

    def pv_main():
        n = 0
        while any(t.startswith("v") for t, _ in g.pend):
            pv(n, D_[0])
            n += 1
        e("s_waitcnt lgkmcnt(0)")
        e("s_barrier")
        c("every wave has issued all of its V loads (wo goes behind them) and stored its max and sum")
        return n
    D_ = [D]
    if not WOPRE:
        gsplit = pv_main()
        assert gsplit >= 18
    stA = g.state()
    DW2 = P.get("DW2", 4)
    sel = lambda rg: vV + 48 + 4 * (rg % 4)

    def out_proj(name, two):
        k = 2 if two else 1
        reg2 = lambda rg: vK + 80 + 4 * rg if rg < WOPRE else vV + 4 * rg
        assert WOPRE <= 4
        if two:
            e(f"v_add_u32 v{vT+13}, 1024, v{vWO}")
            O2 = [(f"p{rg}", t.replace(vr(vK + 32 + 4 * rg), vr(reg2(rg))).replace(f"v{vWO},", f"v{vT+13},")) for rg, (_, t) in enumerate(Ol)]
            wo = [x for pair in zip(Ol, O2) for x in pair]
        else:
            wo = list(Ol)
        if WOPRE:
            g.set_state(stP)
            vs, pre, mix = list(g.pend), wo[:k * WOPRE], []
            step = len(vs) / (len(pre) + 0.0)
            for i, x in enumerate(vs):
                while pre and len(mix) - i < (i + 1) / step:
                    mix.append(pre.pop(0))
                mix.append(x)
            assert not pre
            g.pend = mix
            D_[0] = D + P.get("DP", 1) * k
            gs = pv_main()
            assert gs >= 15 and not g.pend
            g.pend = wo[k * WOPRE:]
        else:
            g.set_state(stA)
            g.pend = wo
            gs = gsplit
        dw = lambda d: d + (k - 1) * P.get("DX", 3)
        g.topup(dw(DW))
        for i in range(gs, 24):
            pv(i, dw(DW))
        write_partial(2)
        g.stamp(8)
        if P.get("last"):
            c("once wave 6 has found the other three workgroups already done, nothing is gained by pacing wo")
            allo = [t for t in g.q] + [t for t, _ in g.pend]
            rest = list(g.pend)
            n = 0
            bursts = []
            while g.pend:
                for _ in range(k):
                    g.waitn(k * DW2 - 1)
                    g.issue()
                if n in P["last"] and g.pend:
                    e(f"ds_read_b32 v{vT1}, v{vT0} offset:{L_SYNC+16}")
                    e("s_waitcnt lgkmcnt(0)")
                    e(f"v_cmp_ne_u32 vcc, 0, v{vT1}")
                    e(f"s_cbranch_vccnz {name}_b{g.pend[0][0]}")
                    bursts.append(g.pend[0][0])
                n += 1
            e(f"s_branch {name}_issued")
            on = False
            for t, text in rest:
                if t in bursts:
                    g.label(f"{name}_b{t}")
                    on = True
                if on:
                    e(text)
            g.label(f"{name}_issued")
            g.q = allo
        else:
            g.pace_until(g.pend[-1][0], k * DW2)
        e(f"s_mov_b32 s{sSPIN}, {SPIN*16}")
        g.label(name)
        e(f"ds_read_b128 {vr(vT+4)}, v{vOBA} offset:{L_OB+16}")
        e(f"ds_read_b128 {vr(vT)}, v{vOBA} offset:{L_OB}")
        e(f"s_sub_u32 s{sSPIN}, s{sSPIN}, 1")
        e(f"s_cbranch_scc1 {name}_x")
        e("s_waitcnt lgkmcnt(0)")
        e(f"v_cmp_eq_u32 vcc, 0, v{vT+6}")
        e(f"s_cbranch_vccnz {name}")
        g.label(name + "_x")
        g.stamp(9)
        for rg in range(13):
            if rg < 12:
                for r in range(4):
                    e(f"v_perm_b32 v{sel(rg)+r}, v{vT+rg//2}, v{vT+rg//2}, v{vQ+4*(rg%2)+r}")
            elif not two:
                e("s_nop 0")
            if rg >= 1:
                g.wait_for(f"o{rg-1}")
                mfma(vACC, sel(rg - 1), vK + 32 + 4 * (rg - 1), rg == 1)
                if two:
                    g.wait_for(f"p{rg-1}")
                    mfma(vACC + 4, sel(rg - 1), reg2(rg - 1), rg == 1)
        e("s_mov_b32 exec_hi, 0")
        e(f"s_nop {5 if two else 6}")
        for r in range(4):
            e(f"v_min_u32 v{vACC+r}, -2, v{vACC+r}")
        e(f"buffer_store_dwordx4 {vr(vACC)}, v{vYA}, {srd(sWS)}, s{sBLK} offen offset:{W_Y} sc1")
        if two:
            for r in range(4):
                e(f"v_min_u32 v{vACC+4+r}, -2, v{vACC+4+r}")
            e(f"buffer_store_dwordx4 {vr(vACC+4)}, v{vYA}, {srd(sWS)}, s{sBLK} offen offset:{W_Y+2048} sc1")
        e("s_mov_b32 exec_hi, -1")
        g.stamp(10)
        e("s_branch L_final")

    e(f"s_cmp_ge_u32 s{sWAVE}, 4")
    e("s_cbranch_scc1 L_roleB")
    e(f"s_cmp_eq_u32 s{sWAVE}, 0")
    e("s_cbranch_scc1 L_role0")
    c("waves 1..3: output columns 128w..128w+127")
    out_proj("L_owait1", False)
    g.label("L_role0")
    c("wave 0: output columns 0..127 and 512..639")
    out_proj("L_owait0", True)

    g.label("L_roleB")
    if WOPRE:
        g.set_state(stP)
        D_[0] = D
        gsplit = pv_main()
        stA = g.state()
    og = vK + 32
    vOA = vT + 13
    e(f"v_and_b32 v{vT+5}, 15, v{vLANE}")
    e(f"v_lshlrev_b32 v{vT+5}, 4, v{vT+5}")
    e(f"s_cmp_lg_u32 s{sWAVE}, 6")
    e("s_cbranch_scc1 L_not6")
    c("wave 6: gather the partials of this workgroup's 48 rows (own one through LDS), normalise, hand to waves 0..3")
    g.set_state(stA)
    e(f"v_lshrrev_b32 v{vT+4}, 4, v{vLANE}")
    e(f"s_mul_i32 s{sOX}, s{sHH}, {4*BLK}")
    e(f"s_add_u32 s{sA}, s{sC}, 3")
    e(f"v_sub_u32 v{vOA}, s{sA}, v{vT+4}")
    e(f"v_and_b32 v{vOA}, 3, v{vOA}")
    e(f"v_lshl_add_u32 v{vOA}, v{vOA}, 8, v{vT+5}")
    e(f"s_movk_i32 s{sA}, {BLK}")
    e(f"v_mad_u32_u24 v{vOA}, v{vT+4}, s{sA}, v{vOA}")
    oload = f"buffer_load_dwordx4 {vr(og)}, v{vOA}, {srd(sWS)}, s{sOX} offen offset:{W_O} sc1"
    NP = P.get("np", 1)
    land = [og] if NP == 1 else [og + 4 + 4 * i for i in range(NP)]
    sweep = lambda i: oload.replace(vr(og), vr(land[i]))
    nsw = [0]

    def early_sweep():
        if nsw[0] < NP:
            e(f"s_mov_b64 exec, s[{sM6}:{sM6+1}]")
            g.vm(f"early{nsw[0]}", sweep(nsw[0]))
            e("s_mov_b64 exec, -1")
            nsw[0] += 1
    early_sweep()
    if NP > 1:
        for k in range(4):
            e(f"v_mov_b32 v{og+k}, -1")
    m, l, t, M, L, ad, fl = vS, vS + 1, vS + 2, vS + 3, vS + 4, vT + 10, vT + 11
    e(f"v_lshrrev_b32 v{ad}, 2, v{vT+5}")
    e(f"v_bfe_u32 v{vT1}, v{vLANE}, 4, 1")
    e(f"v_lshl_add_u32 v{ad}, v{vT1}, 1, v{ad}")
    e(f"v_lshrrev_b32 v{vT1}, 5, v{vLANE}")
    e(f"v_add_u32 v{ad}, v{ad}, v{vT1}")
    e(f"v_mul_u32_u24 v{vT1}, 43, v{ad}")
    e(f"v_lshrrev_b32 v{vT1}, 9, v{vT1}")
    e(f"v_lshlrev_b32 v{ad}, 1, v{ad}")
    e(f"v_lshl_add_u32 v{ad}, v{vT1}, 3, v{ad}")
    e(f"v_lshlrev_b32 v{fl}, 5, v{vT+4}")
    e(f"v_mov_b32 v{vT+12}, 1")
    for i in range(gsplit, 24):
        pv(i, D)
        if i < 23 and (NP > 2 or i == 22):
            early_sweep()
    write_partial(2)
    g.stamp(8)
    while nsw[0] < NP:
        early_sweep()
    e(f"s_mov_b64 exec, s[{sM6}:{sM6+1}]")
    if NP == 1:
        if P.get("last"):
            e("s_waitcnt vmcnt(0)")
            check(og, 4)
            e("s_cbranch_vccnz L_w6_notlast")
            e(f"ds_write_b32 v{vT0}, v{vT+12} offset:{L_SYNC+16}")
            e("s_branch L_w6_poll_ok")
            g.label("L_w6_notlast")
        poll("L_w6_poll", [oload], og, 0, P.get("osleep", 0), P.get("othresh", 0))
    else:
        c("several sweeps in flight; a lane keeps the first written value it sees")
        e(f"s_mov_b32 s{sSPIN}, {SPIN}")
        if P.get("last"):
            e(f"s_waitcnt vmcnt({NP-P.get('lastn', 1)})")
            for i in range(P.get("lastn", 1)):
                for k in range(4):
                    e(f"v_min_u32 v{og+k}, v{og+k}, v{land[i]+k}")
            check(og, 4)
            e("s_cbranch_vccnz L_w6_poll")
            e(f"ds_write_b32 v{vT0}, v{vT+12} offset:{L_SYNC+16}")
            e("s_branch L_w6_poll_ok")
        g.label("L_w6_poll")
        for i in range(NP):
            e(f"s_waitcnt vmcnt({NP-1})")
            for k in range(4):
                e(f"v_min_u32 v{og+k}, v{og+k}, v{land[i]+k}")
            check(og, 4)
            e("s_cbranch_vccz L_w6_poll_ok")
            e("s_mov_b64 exec, vcc")
            if P.get("npsl"):
                e(f"s_sleep {P['npsl']}")
            e(sweep(i))
        e(f"s_sub_u32 s{sSPIN}, s{sSPIN}, 1")
        e("s_cbranch_scc0 L_w6_poll")
        g.label("L_w6_poll_ok")
    e(f"s_mov_b32 s{sSPIN}, {SPIN*16}")
    e(f"s_mov_b64 exec, s[{sOW}:{sOW+1}]")
    g.label("L_w6_own")
    e(f"ds_read_b128 {vr(og)}, v{vT+5} offset:{L_OWN}")
    e(f"s_sub_u32 s{sSPIN}, s{sSPIN}, 1")
    e("s_cbranch_scc1 L_w6_own_x")
    e("s_waitcnt lgkmcnt(0)")
    check(og, 4)
    e("s_cbranch_vccnz L_w6_own")
    g.label("L_w6_own_x")
    e("s_mov_b64 exec, -1")
    g.stamp(9)
    e(f"v_mov_b32_dpp v{M}, v{og} row_newbcast:12 row_mask:0xf bank_mask:0xf")
    e(f"v_mov_b32_dpp v{t}, v{og} row_newbcast:12 row_mask:0xf bank_mask:0xf")
    e(f"v_mov_b32_dpp v{m}, v{og} row_newbcast:12 row_mask:0xf bank_mask:0xf")
    e(f"v_mov_b32_dpp v{l}, v{og+1} row_newbcast:12 row_mask:0xf bank_mask:0xf")
    e(f"v_permlane16_swap_b32 v{M}, v{t}")
    e(f"v_max_f32 v{M}, v{M}, v{t}")
    e(f"v_mov_b32 v{t}, v{M}")
    e("s_nop 1")
    e(f"v_permlane32_swap_b32 v{M}, v{t}")
    e(f"v_max_f32 v{M}, v{M}, v{t}")
    e(f"v_sub_f32 v{m}, v{m}, v{M}")
    e(f"v_exp_f32 v{m}, v{m}")
    e("s_nop 0")
    e(f"v_mul_f32 v{L}, v{l}, v{m}")
    e(f"v_mul_f32 v{t}, v{l}, v{m}")
    for r in range(4):
        e(f"v_mul_f32 v{vACC+r}, v{og+r}, v{m}")
    rows_transpose_reduce(vACC, ([f"v_permlane16_swap_b32 v{L}, v{t}", f"v_add_f32 v{L}, v{L}, v{t}"],
                                 [f"v_mov_b32 v{t}, v{L}", "s_nop 0"]))
    e(f"v_permlane32_swap_b32 v{L}, v{t}")
    e(f"v_add_f32 v{L}, v{L}, v{t}")
    e(f"v_rcp_f32 v{L}, v{L}")
    mask("0x0fff0fff", "0x0fff0fff")
    e(f"v_mul_f32 v{vACC}, v{vACC}, v{L}")
    e(f"v_cvt_pk_bf16_f32 v{vACC}, v{vACC}, v{vACC}")
    e(f"ds_write_b16 v{ad}, v{vACC} offset:{L_OB}")
    e(f"ds_write_b32 v{fl}, v{vT+12} offset:{L_OB+24}")
    e("s_mov_b64 exec, -1")
    e("s_branch L_b5")

    g.label("L_not6")
    g.set_state(stA)
    e(f"s_cmp_lg_u32 s{sWAVE}, 4")
    e("s_cbranch_scc1 L_w57")
    for i in range(gsplit, 24):
        pv(i, D)
    write_partial(2)
    g.stamp(8)
    g.stamp(9)
    e("s_branch L_b5")

    g.label("L_w57")
    g.set_state(stA)
    c("waves 7 and 5 merge the eight waves' partial rows for consumers 0,1 and 2,3: lane = (source half, consumer, piece)")
    f4, l4, mA, Mz, Lp, ra, sa = vS, vS + 4, vK + 32, vT + 8, vT + 9, vT + 10, vT + 11
    e(f"v_lshrrev_b32 v{vT+4}, 5, v{vLANE}")
    e(f"v_lshlrev_b32 v{vT1}, 4, v{vT+4}")
    e(f"v_mov_b32 v{vT0}, 0")
    e(f"ds_read_b128 {vr(mA)}, v{vT0} offset:{L_MX}")
    e(f"ds_read_b128 {vr(mA+4)}, v{vT0} offset:{L_MX+16}")
    e(f"ds_read_b128 {vr(f4)}, v{vT1} offset:{L_MX}")
    e(f"ds_read_b128 {vr(l4)}, v{vT1} offset:{L_LS}")
    e(f"s_sub_u32 s{sA}, 7, s{sWAVE}")
    e(f"v_bfe_u32 v{vT+6}, v{vLANE}, 4, 1")
    e(f"v_add_u32 v{vT+6}, s{sA}, v{vT+6}")
    e(f"v_mul_u32_u24 v{ra}, 192, v{vT+6}")
    e(f"v_add_u32 v{ra}, v{ra}, v{vT+5}")
    e(f"s_movk_i32 s{sA}, 6144")
    e(f"v_mad_u32_u24 v{ra}, v{vT+4}, s{sA}, v{ra}")
    e(f"v_lshl_add_u32 v{vT+7}, v{vT+4}, 3, v{vT+5}")
    e(f"s_sub_u32 s{sA}, 3, s{sC}")
    e(f"v_add_u32 v{sa}, s{sA}, v{vT+6}")
    e(f"v_and_b32 v{sa}, 3, v{sa}")
    e(f"v_lshl_add_u32 v{sa}, v{sa}, 8, v{vT+7}")
    e(f"s_movk_i32 s{sA}, 192")
    e(f"v_cmp_eq_u32 s[10:11], s{sA}, v{vT+5}")
    e(f"v_cmp_eq_u32 s[{sOW}:{sOW+1}], s{sC}, v{vT+6}")
    e(f"s_mov_b32 s{sM6}, 0x1fff1fff")
    e(f"s_mov_b32 s{sM6+1}, 0x1fff1fff")
    e(f"v_cmp_gt_u32 vcc, 32, v{vLANE}")
    e("s_waitcnt lgkmcnt(0)")
    e(f"s_and_b64 s[{sOW}:{sOW+1}], s[{sOW}:{sOW+1}], s[{sM6}:{sM6+1}]")
    e(f"s_andn2_b64 s[{sM6}:{sM6+1}], s[{sM6}:{sM6+1}], s[{sOW}:{sOW+1}]")
    e(f"v_max3_f32 v{Mz}, v{mA}, v{mA+1}, v{mA+2}")
    e(f"v_max3_f32 v{vT1}, v{mA+3}, v{mA+4}, v{mA+5}")
    e(f"v_max3_f32 v{Mz}, v{Mz}, v{mA+6}, v{mA+7}")
    e(f"v_max_f32 v{Mz}, v{Mz}, v{vT1}")
    for w in range(4):
        e(f"v_sub_f32 v{f4+w}, v{f4+w}, v{Mz}")
    for w in range(4):
        e(f"v_exp_f32 v{f4+w}, v{f4+w}")
    e(f"v_cndmask_b32 v{Mz}, 0, v{Mz}, vcc")
    e(f"v_mul_f32 v{Lp}, v{l4}, v{f4}")
    for w in range(1, 4):
        e(f"v_fmac_f32 v{Lp}, v{l4+w}, v{f4+w}")
    for i in range(gsplit, 24):
        pv(i, D)
    write_partial(2)
    g.stamp(8)
    lds_wait("L_w7_rows", 2, 8)
    for p in range(8):
        e(f"ds_read_b128 {vr(vV+4*p)}, v{ra} offset:{L_RED+768*p}")
    for w in range(4):
        p = 2 * w
        e(f"s_waitcnt lgkmcnt({6-p})")
        for h in (0, 2):
            e(f"v_pk_add_f32 {vr(vV+4*p+h,2)}, {vr(vV+4*p+h,2)}, {vr(vV+4*p+4+h,2)}")
        sel_ = "op_sel_hi:[1,0,1]" if w % 2 == 0 else "op_sel:[0,1,0] op_sel_hi:[1,1,1]"
        for h in (0, 2):
            if w == 0:
                e(f"v_pk_mul_f32 {vr(vACC+h,2)}, {vr(vV+h,2)}, {vr(f4,2)} op_sel_hi:[1,0]")
            else:
                e(f"v_pk_fma_f32 {vr(vACC+h,2)}, {vr(vV+4*p+h,2)}, {vr(f4+(w&~1),2)}, {vr(vACC+h,2)} {sel_}")
    e(f"v_cndmask_b32 v{vACC}, v{vACC}, v{Mz}, s[10:11]")
    e(f"v_cndmask_b32 v{vACC+1}, v{vACC+1}, v{Lp}, s[10:11]")
    e("s_nop 0")
    e(f"v_permlane32_swap_b32 v{vACC}, v{vACC+2}")
    e(f"v_permlane32_swap_b32 v{vACC+1}, v{vACC+3}")
    e(f"v_pk_add_f32 {vr(vACC,2)}, {vr(vACC,2)}, {vr(vACC+2,2)}")
    e(f"v_min_u32 v{vACC}, -2, v{vACC}")
    e(f"v_min_u32 v{vACC+1}, -2, v{vACC+1}")
    e(f"s_mov_b64 exec, s[{sM6}:{sM6+1}]")
    e(f"buffer_store_dwordx2 {vr(vACC,2)}, v{sa}, {srd(sWS)}, s{sBLK} offen offset:{W_O} sc1")
    e(f"s_mov_b64 exec, s[{sOW}:{sOW+1}]")
    e("s_cbranch_execz L_noown")
    e(f"ds_write_b64 v{vT+7}, {vr(vACC,2)} offset:{L_OWN}")
    g.label("L_noown")
    e("s_mov_b64 exec, -1")
    g.stamp(9)
    g.label("L_b5")
    g.stamp(10)
    if P.get("latepoll", 1):
        c("no output partial can be complete before this head's o is: do not poll earlier")
        e(f"s_cmp_ge_u32 s{sPROD}, 20")
        e("s_cbranch_scc1 L_done")
        lds_wait("L_late", 0, 1, (), P.get("lsl", 0), off=L_OB + 24)

    g.label("L_final")
    e(f"s_cmp_ge_u32 s{sPROD}, 20")
    e("s_cbranch_scc1 L_done")
    c("workgroup t < 20 of a branch sums columns 32t..32t+31: block[16w + 8k + l/8].y[128t + (l%8)*16]")
    e(f"v_lshrrev_b32 v{vT0}, 3, v{vLANE}")
    e(f"s_movk_i32 s{sA}, {BLK}")
    e(f"v_mad_u32_u24 v{vT0}, v{vT0}, s{sA}, v{vQR}")
    e(f"s_mul_i32 s{sA}, s{sBR}, {128*BLK}")
    e(f"s_mul_i32 s{sB}, s{sWAVE}, {16*BLK}")
    e(f"s_add_u32 s{sA}, s{sA}, s{sB}")
    e(f"s_lshl_b32 s{sB}, s{sPROD}, 7")
    e(f"s_add_u32 s{sA}, s{sA}, s{sB}")
    e(f"s_add_u32 s{sA}, s{sA}, {W_Y}")
    e(f"s_add_u32 s{sB}, s{sA}, {8*BLK}")
    a, b = vV + 64, vV + 68
    yl = [f"buffer_load_dwordx4 {vr(a)}, v{vT0}, {srd(sWS)}, s{sA} offen sc1",
          f"buffer_load_dwordx4 {vr(b)}, v{vT0}, {srd(sWS)}, s{sB} offen sc1"]
    for l_ in yl:
        e(l_)
    ad = vT + 4
    e(f"v_lshlrev_b32 v{ad}, 3, v{vQR}")
    e(f"v_bfe_u32 v{vT1}, v{vLANE}, 4, 1")
    e(f"v_lshl_add_u32 v{ad}, v{vT1}, 6, v{ad}")
    e(f"v_lshrrev_b32 v{vT1}, 5, v{vLANE}")
    e(f"v_lshl_add_u32 v{ad}, v{vT1}, 5, v{ad}")
    e(f"s_lshl_b32 s{sD}, s{sWAVE}, 2")
    e(f"v_add_u32 v{ad}, s{sD}, v{ad}")
    e(f"v_lshlrev_b32 v{vT+5}, 5, v{vLANE}")
    e(f"v_lshlrev_b32 v{vT+6}, 1, v{vLANE}")
    e(f"v_mov_b32 v{vT+7}, 0")
    e(f"v_mov_b32 v{vT+8}, 1")
    e(f"s_mul_i32 s{sD}, s{sBR}, 1280")
    e(f"s_lshl_b32 s{sOX}, s{sPROD}, 6")
    e(f"s_add_u32 s{sD}, s{sD}, s{sOX}")
    poll("L_fin_poll", yl, a, 0, P.get("fsleep", 0), P.get("fthresh", 0))
    e("s_mov_b64 exec, -1")
    g.stamp(11)
    e(f"v_pk_add_f32 {vr(a,2)}, {vr(a,2)}, {vr(b,2)}")
    e(f"v_pk_add_f32 {vr(a+2,2)}, {vr(a+2,2)}, {vr(b+2,2)}")
    rows_transpose_reduce(a)
    e("s_nop 1")
    e(f"v_add_f32_dpp v{a}, v{a}, v{a} row_ror:8 row_mask:0xf bank_mask:0xf")
    e(f"ds_write_b32 v{ad}, v{a} offset:{L_FIN}")
    c("the wave whose row arrives last adds the eight rows (its reads follow its own count)")
    e("s_mov_b64 exec, 1")
    e(f"ds_add_rtn_u32 v{vT1}, v{vT+7}, v{vT+8} offset:{L_SYNC+12}")
    e("s_mov_b32 exec_lo, -1")
    e(f"ds_read_b128 {vr(a)}, v{vT+5} offset:{L_FIN}")
    e(f"ds_read_b128 {vr(b)}, v{vT+5} offset:{L_FIN+16}")
    e("s_waitcnt lgkmcnt(0)")
    e(f"v_readfirstlane_b32 s{sA}, v{vT1}")
    e(f"s_cmp_lg_u32 s{sA}, 7")
    e("s_cbranch_scc1 L_done")
    e(f"v_pk_add_f32 {vr(a,2)}, {vr(a,2)}, {vr(b,2)}")
    e(f"v_pk_add_f32 {vr(a+2,2)}, {vr(a+2,2)}, {vr(b+2,2)}")
    e(f"v_pk_add_f32 {vr(a,2)}, {vr(a,2)}, {vr(a+2,2)}")
    e(f"v_add_f32 v{a}, v{a}, v{a+1}")
    e(f"v_cvt_pk_bf16_f32 v{a}, v{a}, v{a}")
    e(f"buffer_store_short v{a}, v{vT+6}, {srd(sOUT)}, s{sD} offen {P.get('outflags','')}".rstrip())
    e("s_mov_b32 exec_hi, -1")
    g.label("L_done")
    if P.get("pad"):
        g.label("L_pad")
        e("s_memrealtime s[78:79]")
        e("s_waitcnt lgkmcnt(0)")
        e("s_sub_u32 s78, s78, s76")
        e(f"s_cmp_lt_u32 s78, {P['pad']}")
        e("s_cbranch_scc1 L_pad")
    if P.get("diag"):
        g.stamp(12)
        e("s_getreg_b32 s3, hwreg(HW_REG_XCC_ID)")
        e("s_waitcnt vmcnt(0) lgkmcnt(0)")
        for i in range(13):
            e(f"v_mov_b32 v{vV+i}, s{sSTAMP+2*i}")
        e(f"v_mov_b32 v{vV+13}, s3")
        e(f"s_lshl_b32 s{sA}, s2, 3")
        e(f"s_add_u32 s{sA}, s{sA}, s{sWAVE}")
        e(f"s_lshl_b32 s{sA}, s{sA}, 6")
        e(f"s_add_u32 s{sA}, s{sA}, {W_STAMP}")
        e(f"s_mov_b32 s{sWS+2}, {W_STAMP + 256*8*64}")
        e("s_mov_b64 exec, 1")
        for i in range(4):
            e(f"buffer_store_dwordx4 {vr(vV+4*i)}, off, {srd(sWS)}, s{sA} offset:{16*i}")
    g.label("L_end")
    e("s_endpgm")

    out = [HEADER + f"; @launch {'kernel=' + KNAME + ' ' if P.get('aslist') else ''}grid=(256,1,1) block=(512,1,1) lds={P.get('lds', LDS_BYTES)}",
           '.amdgcn_target "amdgcn-amd-amdhsa--gfx950"', ".text", f".globl {KNAME}", ".p2align 8",
           f".type {KNAME},@function", f"{KNAME}:", "\n".join(g.L),
           '.section .rodata,"a"', ".p2align 6", f".amdhsa_kernel {KNAME}",
           "  .amdhsa_next_free_vgpr 256",
           f"  .amdhsa_next_free_sgpr {102 if P.get('diag') else 80}",
           "  .amdhsa_accum_offset 256",
           "  .amdhsa_group_segment_fixed_size 0",
           "  .amdhsa_kernarg_size 104",
           "  .amdhsa_user_sgpr_count 2",
           "  .amdhsa_user_sgpr_kernarg_segment_ptr 1",
           "  .amdhsa_system_sgpr_workgroup_id_x 1",
           "  .amdhsa_float_denorm_mode_32 3",
           ".end_amdhsa_kernel"]
    return "\n".join(out) + "\n"


if __name__ == "__main__":
    from build import build
    cfgs = json.loads(sys.argv[1])
    for name, kw in cfgs.items():
        open(f"{name}.s", "w").write(gen(**kw))
        print(build(f"{name}.s"))
```
